```python
import torch

def _softmax(x, axis=-1):
    return torch.softmax(x, dim=axis)
def _gelu(x):
    return torch.nn.functional.gelu(x, approximate="tanh")
def _silu(x):
    return torch.nn.functional.silu(x)
def _sigmoid(x):
    return torch.sigmoid(x)
def _layernorm(x, axis=-1, eps=1e-5):
    m = x.mean(dim=axis, keepdim=True)
    v = x.var(dim=axis, keepdim=True, unbiased=False)
    return (x - m) / torch.sqrt(v + eps)
def _scatter_add(tgt, idx, src, axis=0):
    return tgt.clone().index_add_(axis, idx, src)
def _segment_sum(src, seg, n):
    out = torch.zeros((n,) + src.shape[1:], dtype=src.dtype)
    return out.index_add_(0, seg, src)
def _pad(x, pw):
    flat = tuple(v for pair in reversed(pw) for v in pair)
    return torch.nn.functional.pad(x, flat)

kernel_name = 'standalone__rmsnorm__sampling'

def setup_inputs():

    _w = (lambda a: (lambda t: t.to(torch.bfloat16) if t.is_floating_point() else t)(torch.as_tensor(a)))
    B, S, D = 1024, 8, 640
    return {
        "x": _w((lambda *s: torch.randn(*s, dtype=torch.bfloat16) * 0.05)(B, S, D)),
        "g": _w((lambda *s: torch.randn(*s, dtype=torch.bfloat16) * 0.05)(D) + 1.0),
    }

def reference(x, g):
    rms = torch.sqrt((x * x).mean(axis=-1, keepdims=True) + 1e-6)
    return x / rms * g
```

```python
import sys, argparse

HDR = """; Kernarg layout for this problem (40 bytes, ptrs only, base s[0:1]):
"""
NAME = "standalone__rmsnorm__sampling_kernel"

def gen(block=256, ldflags="", stflags="", gflags="", mimic=True, mimic_elem=False):
    waves = block // 64
    rows_per_wg = waves * 4
    grid = 8192 // rows_per_wg
    L = []
    a = L.append
    a(HDR + f"; @launch grid=({grid},1,1) block=({block},1,1) lds=0")
    a('.amdgcn_target "amdgcn-amd-amdhsa--gfx950"')
    a(".text")
    a(f".globl {NAME}")
    a(".p2align 8")
    a(f".type {NAME},@function")
    a(f"{NAME}:")
    a("    s_load_dwordx4 s[4:7], s[0:1], 0        ; x, g")
    a("    s_load_dwordx2 s[8:9], s[0:1], 16       ; out")
    a(f"    s_cmp_ge_u32 s2, {grid}")
    a("    s_cbranch_scc1 L_done")
    a(f"    s_mul_i32 s3, s2, {rows_per_wg*1280}")
    a("    v_lshrrev_b32 v1, 4, v0")
    a("    v_and_b32 v2, 15, v0")
    a("    v_lshlrev_b32 v2, 4, v2")
    a("    v_mul_u32_u24 v1, 1280, v1")
    a("    v_add3_u32 v1, v1, v2, s3               ; xoff")
    a("    s_waitcnt lgkmcnt(0)")
    X = 4
    G = 24
    F = 44
    for j in range(5):
        a(f"    global_load_dwordx4 v[{X+4*j}:{X+4*j+3}], v1, s[4:5] offset:{256*j} {ldflags}")
    for j in range(5):
        a(f"    global_load_dwordx4 v[{G+4*j}:{G+4*j+3}], v2, s[6:7] offset:{256*j} {gflags}")
    a("    v_mov_b32 v3, 0")
    a("    s_mov_b32 s10, 0xffff0000")
    for j in range(5):
        a(f"    s_waitcnt vmcnt({9-j})")
        for k in range(4):
            r = X+4*j+k
            a(f"    v_dot2c_f32_bf16 v3, v{r}, v{r}")
    a("    s_nop 2")
    for d in (8,4,2,1):
        a(f"    v_add_f32_dpp v3, v3, v3 row_ror:{d} row_mask:0xf bank_mask:0xf")
        a("    s_nop 1")
    a("    v_mul_f32 v3, 0x3acccccd, v3            ; * 1/640")
    if mimic:
        a("    v_cvt_pk_bf16_f32 v3, v3, v3")
        a("    v_and_b32 v3, s10, v3")
        a("    v_add_f32 v3, 0x358637bd, v3            ; + 1e-6")
        a("    v_cvt_pk_bf16_f32 v3, v3, v3")
        a("    v_and_b32 v3, s10, v3")
        a("    v_sqrt_f32 v3, v3")
        a("    s_nop 0")
        a("    v_cvt_pk_bf16_f32 v3, v3, v3")
        a("    v_and_b32 v3, s10, v3")
        a("    v_rcp_f32 v0, v3")
    else:
        a("    v_add_f32 v3, 0x358637bd, v3            ; + 1e-6")
        a("    v_rsq_f32 v0, v3")
    a("    s_waitcnt vmcnt(0)")
    T = 44
    for j in range(5):
        for k in range(4):
            r = X+4*j+k
            g = G+4*j+k
            t = T + 4*(k%2)
            a(f"    v_lshlrev_b32 v{t}, 16, v{r}")
            a(f"    v_and_b32 v{t+1}, s10, v{r}")
            a(f"    v_lshlrev_b32 v{t+2}, 16, v{g}")
            a(f"    v_and_b32 v{t+3}, s10, v{g}")
            a(f"    v_pk_mul_f32 v[{t}:{t+1}], v[{t}:{t+1}], v[0:1] op_sel_hi:[1,0]")
            if mimic_elem:
                a(f"    v_cvt_pk_bf16_f32 v{t+1}, v{t}, v{t+1}")
                a(f"    v_lshlrev_b32 v{t}, 16, v{t+1}")
                a(f"    v_and_b32 v{t+1}, s10, v{t+1}")
            a(f"    v_pk_mul_f32 v[{t}:{t+1}], v[{t}:{t+1}], v[{t+2}:{t+3}]")
            a(f"    v_cvt_pk_bf16_f32 v{r}, v{t}, v{t+1}")
        a(f"    global_store_dwordx4 v1, v[{X+4*j}:{X+4*j+3}], s[8:9] offset:{256*j} {stflags}")
    a("L_done:")
    a("    s_endpgm")
    a('.section .rodata,"a"')
    a(".p2align 6")
    a(f".amdhsa_kernel {NAME}")
    a("  .amdhsa_next_free_vgpr 52")
    a("  .amdhsa_next_free_sgpr 16")
    a("  .amdhsa_accum_offset 52")
    a("  .amdhsa_group_segment_fixed_size 0")
    a("  .amdhsa_kernarg_size 40")
    a("  .amdhsa_user_sgpr_count 2")
    a("  .amdhsa_user_sgpr_kernarg_segment_ptr 1")
    a("  .amdhsa_system_sgpr_workgroup_id_x 1")
    a("  .amdhsa_float_denorm_mode_32 3")
    a(".end_amdhsa_kernel")
    return "\n".join(L) + "\n"

if __name__ == "__main__":
    p = argparse.ArgumentParser()
    p.add_argument("-o", default="/dev/stdout")
    p.add_argument("--block", type=int, default=256)
    p.add_argument("--ld", default="")
    p.add_argument("--st", default="")
    p.add_argument("--g", default="")
    p.add_argument("--nomimic", action="store_true")
    p.add_argument("--mimic_elem", action="store_true")
    x = p.parse_args()
    open(x.o, "w").write(gen(x.block, x.ld, x.st, x.g, not x.nomimic, x.mimic_elem))
```

```python
HDR = """; Kernarg layout for this problem (40 bytes, ptrs only, base s[0:1]):
"""
NAME = "standalone__rmsnorm__sampling_kernel"

def gen(block=256, ld="", st="", gmode="after5", gpos=5, dotmul=False):
    waves = block // 64
    rows_per_wg = waves * 4
    grid = 8192 // rows_per_wg
    lds = waves * 1024 if gmode == "lds" else 0
    L = []; a = L.append
    a(HDR + f"; @launch grid=({grid},1,1) block=({block},1,1) lds={lds}")
    a('.amdgcn_target "amdgcn-amd-amdhsa--gfx950"'); a(".text"); a(f".globl {NAME}"); a(".p2align 12"); a(".p2align 8"); a(f".type {NAME},@function"); a(f"{NAME}:")
    a("    s_load_dwordx4 s[4:7], s[0:1], 0        ; x, g")
    a("    s_load_dwordx2 s[8:9], s[0:1], 16       ; out")
    a(f"    s_cmpk_ge_u32 s2, {grid}")
    a("    s_cbranch_scc1 L_done")
    a(f"    s_mul_i32 s3, s2, {rows_per_wg*1280}")
    a("    v_lshrrev_b32 v1, 4, v0")
    a("    v_and_b32 v2, 15, v0")
    a("    v_lshlrev_b32 v2, 4, v2")
    a("    v_mul_u32_u24 v1, 1280, v1")
    a("    v_add3_u32 v1, v1, v2, s3               ; xoff")
    a("    s_mov_b32 s10, 0xffff0000")
    X = 4; G = 24; F = 44
    if gmode == "lds":
        a("    v_lshlrev_b32 v85, 4, v0                ; lds write addr = tid*16")
        a("    v_and_b32 v86, 0x3f0, v85               ; lane*16")
        a("    v_and_b32 v84, 0xfc00, v85              ; wave lds base")
        a("    v_add_u32 v84, v84, v2                  ; lds read addr")
    a("    v_mov_b32 v3, 0")
    a("    s_waitcnt lgkmcnt(0)")
    order = []
    gl = {"direct":[('g',j) for j in range(5)], "lds":[('gl',0),('gl',1)], "none":[]}[gmode]
    xs = [('x',j) for j in range(5)]
    order = xs[:gpos] + gl + xs[gpos:]
    for kind,j in order:
        if kind=='x': a(f"    global_load_dwordx4 v[{X+4*j}:{X+4*j+3}], v1, s[4:5] offset:{256*j} {ld}")
        elif kind=='g': a(f"    global_load_dwordx4 v[{G+4*j}:{G+4*j+3}], v2, s[6:7] offset:{256*j}")
        elif j==0: a(f"    global_load_dwordx4 v[{G}:{G+3}], v86, s[6:7]")
        else: a(f"    global_load_dwordx4 v[{G+16}:{G+19}], v2, s[6:7] offset:1024")
    n = len(order)
    def wait_for(item):
        i = order.index(item)
        a(f"    s_waitcnt vmcnt({n-1-i})")
    def xunpack(j):
        ins=[]
        for k in range(4):
            r=X+4*j+k; f=F+8*j+2*k
            ins.append(f"    v_lshlrev_b32 v{f}, 16, v{r}")
            ins.append(f"    v_and_b32 v{f+1}, s10, v{r}")
        return ins
    def gmul(j):
        ins=[]
        for k in range(4):
            g=G+4*j+k; f=F+8*j+2*k; t=88+2*(k%2)
            ins.append(f"    v_lshlrev_b32 v{t}, 16, v{g}")
            ins.append(f"    v_and_b32 v{t+1}, s10, v{g}")
            ins.append(f"    v_pk_mul_f32 v[{f}:{f+1}], v[{f}:{f+1}], v[{t}:{t+1}]")
        return ins
    def gunpack(j):
        ins=[]
        for k in range(4):
            g=G+4*j+k; f=F+8*j+2*k
            ins.append(f"    v_lshlrev_b32 v{f}, 16, v{g}")
            ins.append(f"    v_and_b32 v{f+1}, s10, v{g}")
        return ins
    def xmul(j):
        ins=[]
        for k in range(4):
            r=X+4*j+k; f=F+8*j+2*k; t=88+2*(k%2)
            ins.append(f"    v_lshlrev_b32 v{t}, 16, v{r}")
            ins.append(f"    v_and_b32 v{t+1}, s10, v{r}")
            ins.append(f"    v_pk_mul_f32 v[{f}:{f+1}], v[{f}:{f+1}], v[{t}:{t+1}]")
        return ins
    def dots(j):
        for k in range(4):
            r=X+4*j+k
            a(f"    v_dot2c_f32_bf16 v3, v{r}, v{r}")
    def gready():
        if gmode=="lds":
            wait_for(('gl',0))
            a(f"    ds_write_b128 v85, v[{G}:{G+3}]")
            a("    s_waitcnt lgkmcnt(0)")
            for j in range(4): a(f"    ds_read_b128 v[{G+4*j}:{G+4*j+3}], v84 offset:{256*j}")
    fill=[]
    for j in range(gpos):
        wait_for(('x',j));
        if j==4: a(";XLAST")
        dots(j)
        if j<4:
            for i in xunpack(j): a(i)
        else: fill += xunpack(4)
    def gphase(defer):
        out=[]
        if gmode=="none":
            return out
        for j in ([4,0,1,2,3] if gmode=="lds" else range(5)):
            if gmode=="direct": out.append(f"    s_waitcnt vmcnt({n-1-order.index(('g',j))})")
            elif j==4: out.append(f"    s_waitcnt vmcnt({n-1-order.index(('gl',1))})")
            else: out.append(f"    s_waitcnt lgkmcnt({3-j})")
            out += gmul(j) if j<gpos else gunpack(j)
        return out
    post=[]
    if gpos<5:
        gready()
        for i in gphase(False): a(i)
        for j in range(gpos,5):
            wait_for(('x',j))
            if j==4: a(";XLAST")
            dots(j)
            m = xmul(j) if gmode!="none" else xunpack(j)
            if j<4:
                for i in m: a(i)
            else: fill += m
    def take(k):
        for _ in range(k):
            if fill: a(fill.pop(0))
            else: a("    s_nop 0")
    if gpos==5: gready()
    take(3)
    for d in (8,4,2,1):
        a(f"    v_add_f32_dpp v3, v3, v3 row_ror:{d} row_mask:0xf bank_mask:0xf")
        if d != 1: take(2)
    a("    v_mov_b32 v2, 0x358637bd                ; 1e-6")
    a("    v_fmac_f32 v2, 0x3acccccd, v3           ; + ss/640")
    a("    v_rsq_f32 v2, v2")
    take(max(len(fill),1))
    if gpos==5 and gmode!="none":
        a("    s_waitcnt vmcnt(0) lgkmcnt(0)")
    a(";PRESTORE")
    for j in range(5):
        if gpos==5 and gmode!="none":
            for i in gmul(j): a(i)
        for k in range(4):
            f = F+8*j+2*k
            a(f"    v_pk_mul_f32 v[{f}:{f+1}], v[{f}:{f+1}], v[2:3] op_sel_hi:[1,0]")
        for k in range(4):
            r = X+4*j+k; f = F+8*j+2*k
            a(f"    v_cvt_pk_bf16_f32 v{r}, v{f}, v{f+1}")
        a(f"    global_store_dwordx4 v1, v[{X+4*j}:{X+4*j+3}], s[8:9] offset:{256*j} {st}")
    a("L_done:"); a("    s_endpgm")
    a('.section .rodata,"a"'); a(".p2align 6"); a(f".amdhsa_kernel {NAME}")
    a("  .amdhsa_next_free_vgpr 92"); a("  .amdhsa_next_free_sgpr 16"); a("  .amdhsa_accum_offset 92")
    a("  .amdhsa_group_segment_fixed_size 0"); a("  .amdhsa_kernarg_size 40"); a("  .amdhsa_user_sgpr_count 2")
    a("  .amdhsa_user_sgpr_kernarg_segment_ptr 1"); a("  .amdhsa_system_sgpr_workgroup_id_x 1"); a("  .amdhsa_float_denorm_mode_32 3")
    a(".end_amdhsa_kernel")
    return "\n".join(L) + "\n", grid, block, lds

if __name__ == "__main__":
    import stampgen
    specs=[]; sspecs=[]
    def mk(name, **k):
        s,g,b,l=gen(**k); open(f"var/{name}.s","w").write(s); specs.append(f"var/{name}.co:{g}:{b}:{l}")
        pts=[("    s_load_dwordx4 s[4:7], s[0:1], 0        ; x, g\n",False),
             ("    s_waitcnt lgkmcnt(0)\n",True),
             (";XLAST\n",True),
             (";PRESTORE\n",True),
             ("L_done:\n",False)]
        ss=stampgen.add_stamps(s,pts,b//64,tmpv=(92,94,96))
        open(f"S{name}.s","w").write(ss); sspecs.append(f"var/S{name}.co:{g}:{b}:{l}")
    mk("k_none",gmode="none",gpos=5)
    mk("k_d0",gmode="direct",gpos=0)
    mk("k_d2",gmode="direct",gpos=2)
    mk("k_d5",gmode="direct",gpos=5)
    mk("k_l0",gmode="lds",gpos=0)
    mk("k_l2",gmode="lds",gpos=2)
    mk("k_l4",gmode="lds",gpos=4)
    mk("k_l5",gmode="lds",gpos=5)
    print(" ".join(specs)); print(" ".join(sspecs))
```

```python
import re
def add_stamps(s, points, waves_per_wg, nsg=40, tmpv=(60,62,64)):
    for k,(anchor,after) in enumerate(points):
        st=f"    s_memrealtime s[{20+2*k}:{21+2*k}]\n"
        assert anchor in s, anchor
        s = s.replace(anchor, (anchor+st) if after else (st+anchor), 1)
    n=len(points)
    tail = "    s_waitcnt vmcnt(0)\n"
    tail += f"    s_memrealtime s[{20+2*n}:{21+2*n}]\n"
    tail += "    s_load_dwordx2 s[18:19], s[0:1], 32\n"
    tail += "    s_getreg_b32 s16, hwreg(HW_REG_XCC_ID)\n"
    tail += "    s_getreg_b32 s17, hwreg(HW_REG_HW_ID)\n"
    tail += "    s_waitcnt lgkmcnt(0)\n"
    tail += f"    v_mov_b32 v{tmpv[0]}, s38\n"
    tail += f"    v_lshlrev_b32 v{tmpv[0]}, 6, v{tmpv[0]}\n"
    tail += "    s_mov_b64 exec, 1\n"
    for k in range(n+1):
        tail += f"    v_mov_b32 v{tmpv[1]}, s{20+2*k}\n    v_mov_b32 v{tmpv[1]+1}, s{21+2*k}\n"
        tail += f"    global_store_dwordx2 v{tmpv[0]}, v[{tmpv[1]}:{tmpv[1]+1}], s[18:19] offset:{8*k}\n"
        tail += "    s_nop 2\n"
    tail += f"    v_mov_b32 v{tmpv[1]}, s16\n    v_mov_b32 v{tmpv[1]+1}, s17\n"
    tail += f"    global_store_dwordx2 v{tmpv[0]}, v[{tmpv[1]}:{tmpv[1]+1}], s[18:19] offset:56\n"
    s = s.replace("L_done:\n", tail+"L_done:\n",1)
    head = f"    v_readfirstlane_b32 s38, v0\n    s_nop 3\n    s_lshr_b32 s38, s38, 6\n    s_mul_i32 s39, s2, {waves_per_wg}\n    s_add_u32 s38, s38, s39\n"
    s = s.replace("    s_cbranch_scc1 L_done\n", "    s_cbranch_scc1 L_done\n"+head,1)
    s = re.sub(r"next_free_sgpr \d+", f"next_free_sgpr {nsg}", s)
    m = re.search(r"next_free_vgpr (\d+)", s)
    nv = max(int(m.group(1)), tmpv[2])
    s = re.sub(r"next_free_vgpr \d+", f"next_free_vgpr {nv}", s)
    s = re.sub(r"accum_offset \d+", f"accum_offset {nv}", s)
    return s
if __name__=="__main__":
    import gen1
    for name,st in [("s_plain",""),("s_sc1","sc1")]:
        base = gen1.gen(256, "", st, "", False, False)
        pts=[("    s_load_dwordx4 s[4:7], s[0:1], 0        ; x, g\n",False),
             ("    s_waitcnt lgkmcnt(0)\n",True),
             ("    s_waitcnt vmcnt(9)\n",True),
             ("    s_waitcnt vmcnt(5)\n",True),
             ("    s_waitcnt vmcnt(0)\n",True),
             ("L_done:\n",False)]
        open(f"var/{name}.s","w").write(add_stamps(base,pts,4))
```

```python
import re
def add_probe(s, anchor, after, mode, K=10, occ=1, W=10000):
    first = re.search(r"^    s_load_dwordx4 s\[4:7\], s\[0:1\], 0.*\n", s, re.M).group(0)
    s = s.replace(first, "    s_memrealtime s[20:21]\n" + first, 1)
    if anchor == "END":
        pre = "    s_waitcnt vmcnt(0)\n    s_memrealtime s[22:23]\n"
    elif anchor is None:
        pre = "    s_waitcnt vmcnt(0) lgkmcnt(0)\n    s_mov_b32 s22, s20\n"
    else:
        assert anchor in s, anchor
        st = "    s_memrealtime s[22:23]\n"
        s = s.replace(anchor, (anchor + st) if after else (st + anchor), 1)
        pre = "    s_waitcnt vmcnt(0)\n"
    tail = pre + f"""    s_load_dwordx2 s[24:25], s[0:1], 24
    s_waitcnt lgkmcnt(0) vmcnt(0)
    s_mov_b64 exec, 1
L_sp0:
    s_sleep 4
    s_memrealtime s[30:31]
    s_waitcnt lgkmcnt(0)
    s_sub_u32 s28, s30, s20
    s_cmp_lt_u32 s28, 1000
    s_cbranch_scc1 L_sp0
    s_not_b32 s26, s20
    {"s_not_b32 s27, s22" if mode=="min" else "s_mov_b32 s27, s22"}
    v_mov_b32 v4, 0
    v_mov_b32 v5, s26
    v_mov_b32 v6, s27
    global_atomic_umax v4, v5, s[24:25] sc1
    global_atomic_umax v4, v6, s[24:25] offset:128 sc1
    s_waitcnt vmcnt(0)
    s_or_b32 s28, s2, s38
    s_cmp_lg_u32 s28, 0
    s_cbranch_scc1 L_done
L_sp1:
    s_sleep 2
    s_memrealtime s[30:31]
    s_waitcnt lgkmcnt(0)
    s_sub_u32 s28, s30, s20
    s_cmp_lt_u32 s28, {W-500}
    s_cbranch_scc1 L_sp1
    global_load_dword v7, v4, s[24:25] sc0 sc1
    global_load_dword v8, v4, s[24:25] offset:128 sc0 sc1
    s_waitcnt vmcnt(0)
    v_readfirstlane_b32 s32, v7
    v_readfirstlane_b32 s33, v8
    s_nop 3
    s_not_b32 s32, s32
    {"s_not_b32 s33, s33" if mode=="min" else "s_nop 0"}
    s_sub_u32 s33, s33, s32
    s_min_u32 s33, s33, 2000
    v_mov_b32 v9, s33
    global_store_dword v4, v9, s[24:25] offset:16
    s_mul_i32 s33, s33, {K}
    s_add_u32 s33, s33, {W}
L_sp2:
    s_sleep 1
    s_memrealtime s[30:31]
    s_waitcnt lgkmcnt(0)
    s_sub_u32 s28, s30, s32
    s_cmp_lt_u32 s28, s33
    s_cbranch_scc1 L_sp2
"""
    s = s.replace("L_done:\n", tail + "L_done:\n", 1)
    s = s.replace("    s_cbranch_scc1 L_done\n", "    s_cbranch_scc1 L_done\n    v_readfirstlane_b32 s38, v0\n", 1)
    s = re.sub(r"next_free_sgpr \d+", "next_free_sgpr 40", s)
    return s
if __name__ == "__main__":
    import gen3
    base,g,b,l = gen3.gen(gmode="direct", gpos=5)
    P = {"q_base":(None,True,"min"), "q_s0max":(None,True,"max"), "q_s1max":("    s_waitcnt lgkmcnt(0)\n",True,"max"),
         "q_first":("    s_waitcnt vmcnt(9)\n",True,"min"), "q_last":(";XLAST\n",True,"max"), "q_end":("END",True,"max"),
         "q_s1min":("    s_waitcnt lgkmcnt(0)\n",True,"min")}
    for n,(a,af,m) in P.items():
        open(f"var/{n}.s","w").write(add_probe(base,a,af,m))
```

```python
import re, sys
NAME="standalone__rmsnorm__sampling_kernel"
def wrap(s, K=10):
    m = re.search(r"; @launch grid=\((\d+),1,1\) block=\((\d+),1,1\) lds=(\d+)", s)
    g,b,l = m.groups()
    s = s.replace(m.group(0), f"; @launch kernel={NAME} grid=({g},1,1) block=({b},1,1) lds={l}\n; @launch kernel=amp_kernel grid=(1,1,1) block=(64,1,1) lds=0")
    s = s.replace(f"{NAME}:\n", f"{NAME}:\n    s_memrealtime s[40:41]\n    v_readfirstlane_b32 s42, v0\n", 1)
    body_end = s.index('.section .rodata')
    main = s[:body_end]; rest = s[body_end:]
    main = main.replace("L_done:\n    s_endpgm\n", "@@DONE@@")
    main = main.replace("    s_endpgm\n", "    s_branch L_rec\n")
    rec = """L_rec:
    s_cmp_ge_u32 s2, 8
    s_cbranch_scc1 L_done
    s_cmp_lg_u32 s42, 0
    s_cbranch_scc1 L_done
    s_load_dwordx2 s[44:45], s[0:1], 32
    s_lshl_b32 s43, s2, 2
    s_mov_b64 exec, 1
    s_waitcnt vmcnt(0) lgkmcnt(0)
    v_mov_b32 v4, s43
    v_mov_b32 v5, s40
    global_store_dword v4, v5, s[44:45]
L_done:
    s_endpgm
.p2align 8
.globl amp_kernel
.type amp_kernel,@function
amp_kernel:
    s_memrealtime s[20:21]
    s_load_dwordx4 s[4:7], s[0:1], 24
    s_cmp_lg_u32 s2, 0
    s_cbranch_scc1 A_done
    s_waitcnt lgkmcnt(0)
    s_load_dwordx8 s[8:15], s[6:7], 0
    s_waitcnt lgkmcnt(0)
    s_sub_u32 s8, s20, s8
    s_sub_u32 s9, s20, s9
    s_sub_u32 s10, s20, s10
    s_sub_u32 s11, s20, s11
    s_sub_u32 s12, s20, s12
    s_sub_u32 s13, s20, s13
    s_sub_u32 s14, s20, s14
    s_sub_u32 s15, s20, s15
    s_max_u32 s8, s8, s9
    s_max_u32 s10, s10, s11
    s_max_u32 s12, s12, s13
    s_max_u32 s14, s14, s15
    s_max_u32 s8, s8, s10
    s_max_u32 s12, s12, s14
    s_max_u32 s8, s8, s12
    s_min_u32 s8, s8, 3000
    v_mov_b32 v1, 0
    v_mov_b32 v2, s8
    s_mov_b64 exec, 1
    global_store_dword v1, v2, s[6:7] offset:64
    s_mul_i32 s8, s8, %d
A_spin:
    s_sleep 1
    s_memrealtime s[22:23]
    s_waitcnt lgkmcnt(0)
    s_sub_u32 s16, s22, s20
    s_cmp_lt_u32 s16, s8
    s_cbranch_scc1 A_spin
A_done:
    s_endpgm
""" % K
    main = main.replace("@@DONE@@", rec)
    rest = re.sub(r"next_free_sgpr \d+", "next_free_sgpr 48", rest)
    rest += """.p2align 6
.amdhsa_kernel amp_kernel
  .amdhsa_next_free_vgpr 8
  .amdhsa_next_free_sgpr 32
  .amdhsa_accum_offset 8
  .amdhsa_group_segment_fixed_size 0
  .amdhsa_kernarg_size 40
  .amdhsa_user_sgpr_count 2
  .amdhsa_user_sgpr_kernarg_segment_ptr 1
  .amdhsa_system_sgpr_workgroup_id_x 1
.end_amdhsa_kernel
"""
    return main + rest
if __name__=="__main__":
    for f in sys.argv[1:]:
        s=open(f"var/{f}.s").read()
        open(f"amp_{f}.s","w").write(wrap(s))
```

```python
HDR = """; Kernarg layout for this problem (40 bytes, ptrs only, base s[0:1]):
"""
NAME = "standalone__rmsnorm__sampling_kernel"

def gen(block=512, ld="", st="nt", endbar=False, stage=None, gafter=0):
    waves = block // 64
    rows_per_wg = waves * 4
    grid = 8192 // rows_per_wg
    lds = 1280
    L = []; a = L.append
    a(HDR + f"; @launch grid=({grid},1,1) block=({block},1,1) lds={lds}")
    a('.amdgcn_target "amdgcn-amd-amdhsa--gfx950"'); a(".text"); a(f".globl {NAME}"); a(".p2align 12"); a(".p2align 8"); a(f".type {NAME},@function"); a(f"{NAME}:")
    a("    s_load_dwordx4 s[4:7], s[0:1], 0        ; x, g")
    a("    s_load_dwordx2 s[8:9], s[0:1], 16       ; out")
    a(f"    s_cmpk_ge_u32 s2, {grid}")
    a("    s_cbranch_scc1 L_done")
    a("    v_readfirstlane_b32 s11, v0             ; wave*64")
    a(f"    s_mul_i32 s3, s2, {rows_per_wg*1280}")
    a("    v_lshrrev_b32 v1, 4, v0")
    a("    v_and_b32 v2, 15, v0")
    a("    v_lshlrev_b32 v2, 4, v2")
    a("    v_mul_u32_u24 v1, 1280, v1")
    a("    v_add3_u32 v1, v1, v2, s3               ; xoff")
    a("    s_mov_b32 s10, 0xffff0000")
    a("    v_lshlrev_b32 v84, 4, v0                ; tid*16")
    a("    s_mov_b32 m0, 0")
    a("    v_mov_b32 v3, 0")
    X = 4; G = 24; F = 44
    def xl(js):
        for j in js: a(f"    global_load_dwordx4 v[{X+4*j}:{X+4*j+3}], v1, s[4:5] offset:{256*j} {ld}")
    if stage is not None:
        a(f"    s_cmpk_ge_u32 s11, {block//2}")
        a("    s_waitcnt lgkmcnt(0)")
        a("    s_cbranch_scc1 L_late")
        a("    s_cmp_lg_u32 s11, 0")
    else:
        a("    s_cmp_lg_u32 s11, 0")
        a("    s_waitcnt lgkmcnt(0)")
    xl(range(gafter))
    a("    s_cbranch_scc1 L_nog")
    a("    global_load_lds_dwordx4 v84, s[6:7]")
    a("    s_mov_b64 exec, 0xffff")
    a("    global_load_lds_dwordx4 v84, s[6:7] offset:1024")
    a("    s_mov_b64 exec, -1")
    a("L_nog:")
    xl(range(gafter,5))
    k = max(stage or 0, gafter)
    a(f"    s_waitcnt vmcnt({5-k})")
    a("    s_barrier")
    if stage is not None:
        a("    s_branch L_go")
        a("L_late:")
        a("    s_barrier")
        xl(range(5))
        a("L_go:")
    for j in range(5): a(f"    ds_read_b128 v[{G+4*j}:{G+4*j+3}], v2 offset:{256*j}")
    for j in range(5):
        a(f"    s_waitcnt lgkmcnt({4-j})")
        for kk in range(4):
            g=G+4*j+kk; f=F+8*j+2*kk
            a(f"    v_lshlrev_b32 v{f}, 16, v{g}")
            a(f"    v_and_b32 v{f+1}, s10, v{g}")
    def xmul(j):
        ins=[]
        for kk in range(4):
            r=X+4*j+kk; f=F+8*j+2*kk; t=G+2*kk
            ins.append(f"    v_lshlrev_b32 v{t}, 16, v{r}")
            ins.append(f"    v_and_b32 v{t+1}, s10, v{r}")
            ins.append(f"    v_pk_mul_f32 v[{f}:{f+1}], v[{f}:{f+1}], v[{t}:{t+1}]")
        return ins
    fill=[]
    for j in range(5):
        a(f"    s_waitcnt vmcnt({4-j})")
        if j==4: a(";XLAST")
        for kk in range(4):
            r=X+4*j+kk
            a(f"    v_dot2c_f32_bf16 v3, v{r}, v{r}")
        if j<4:
            for i in xmul(j): a(i)
        else: fill += xmul(4)
    def take(n):
        for _ in range(n):
            if fill: a(fill.pop(0))
            else: a("    s_nop 0")
    take(3)
    for d in (8,4,2,1):
        a(f"    v_add_f32_dpp v3, v3, v3 row_ror:{d} row_mask:0xf bank_mask:0xf")
        if d != 1: take(2)
    a("    v_mov_b32 v2, 0x358637bd                ; 1e-6")
    a("    v_fmac_f32 v2, 0x3acccccd, v3           ; + ss/640")
    a("    v_rsq_f32 v2, v2")
    take(max(len(fill),1))
    a(";PRESTORE")
    for j in range(5):
        for kk in range(4):
            f = F+8*j+2*kk
            a(f"    v_pk_mul_f32 v[{f}:{f+1}], v[{f}:{f+1}], v[2:3] op_sel_hi:[1,0]")
        for kk in range(4):
            r = X+4*j+kk; f = F+8*j+2*kk
            a(f"    v_cvt_pk_bf16_f32 v{r}, v{f}, v{f+1}")
        if not endbar:
            a(f"    global_store_dwordx4 v1, v[{X+4*j}:{X+4*j+3}], s[8:9] offset:{256*j} {st}")
    if endbar:
        a("    s_barrier")
        for j in range(5):
            a(f"    global_store_dwordx4 v1, v[{X+4*j}:{X+4*j+3}], s[8:9] offset:{256*j} {st}")
    a("L_done:"); a("    s_endpgm")
    a('.section .rodata,"a"'); a(".p2align 6"); a(f".amdhsa_kernel {NAME}")
    a("  .amdhsa_next_free_vgpr 88"); a("  .amdhsa_next_free_sgpr 16"); a("  .amdhsa_accum_offset 88")
    a("  .amdhsa_group_segment_fixed_size 0"); a("  .amdhsa_kernarg_size 40"); a("  .amdhsa_user_sgpr_count 2")
    a("  .amdhsa_user_sgpr_kernarg_segment_ptr 1"); a("  .amdhsa_system_sgpr_workgroup_id_x 1"); a("  .amdhsa_float_denorm_mode_32 3")
    a(".end_amdhsa_kernel")
    return "\n".join(L) + "\n", grid, block, lds

if __name__ == "__main__":
    import amp, json
    specs=[]
    def mk(name, **k):
        s,g,b,l=gen(**k); open(f"var/{name}.s","w").write(s); specs.append(f"var/{name}.co:{g}:{b}:{l}")
        open(f"amp_{name}.s","w").write(amp.wrap(s))
    mk("z_512")
    mk("z_256",block=256)
    mk("z_512_pl",st="")
    mk("z_512_eb",endbar=True)
    mk("z_256_eb",block=256,endbar=True)
    mk("z_512_s1",stage=1)
    mk("z_512_s3",stage=3)
    mk("z_512_s5",stage=5)
    mk("z_512_g2",gafter=2)
    mk("z_1024",block=1024)
    print(" ".join(specs)); print(json.dumps(["bench/bench"]+[x.split(":")[0] for x in specs]))
```

```python
import re, sys
NAME="standalone__rmsnorm__sampling_kernel"
def wrap(s, K=10):
    m = re.search(r"; @launch grid=\((\d+),1,1\) block=\((\d+),1,1\) lds=(\d+)", s)
    g,b,l = m.groups()
    g=int(g)
    s = s.replace(m.group(0), f"; @launch kernel={NAME} grid=({g+8},1,1) block=({b},1,1) lds={l}\n; @launch kernel=amp_kernel grid=(1,1,1) block=(64,1,1) lds=0")
    s = s.replace(f"{NAME}:\n", f"{NAME}:\n    s_memrealtime s[40:41]\n", 1)
    body_end = s.index('.section .rodata')
    main = s[:body_end]; rest = s[body_end:]
    assert main.count("    s_cbranch_scc1 L_done\n")>=1
    main = main.replace("    s_cbranch_scc1 L_done\n", "    s_cbranch_scc1 L_rec\n", 1)
    main = main.replace("L_done:\n    s_endpgm\n", "@@DONE@@")
    rec = """L_done:
    s_endpgm
L_rec:
    v_readfirstlane_b32 s42, v0
    s_sub_u32 s43, s2, @G@
    s_cmp_ge_u32 s43, 8
    s_cbranch_scc1 L_done2
    s_cmp_lg_u32 s42, 0
    s_cbranch_scc1 L_done2
    s_load_dwordx2 s[44:45], s[0:1], 32
    s_lshl_b32 s43, s43, 2
    s_mov_b64 exec, 1
    s_waitcnt vmcnt(0) lgkmcnt(0)
    v_mov_b32 v4, s43
    v_mov_b32 v5, s40
    global_store_dword v4, v5, s[44:45]
L_done2:
    s_endpgm
.p2align 8
.globl amp_kernel
.type amp_kernel,@function
amp_kernel:
    s_memrealtime s[20:21]
    s_load_dwordx4 s[4:7], s[0:1], 24
    s_cmp_lg_u32 s2, 0
    s_cbranch_scc1 A_done
    s_waitcnt lgkmcnt(0)
    s_load_dwordx8 s[8:15], s[6:7], 0
    s_waitcnt lgkmcnt(0)
    s_sub_u32 s8, s20, s8
    s_sub_u32 s9, s20, s9
    s_sub_u32 s10, s20, s10
    s_sub_u32 s11, s20, s11
    s_sub_u32 s12, s20, s12
    s_sub_u32 s13, s20, s13
    s_sub_u32 s14, s20, s14
    s_sub_u32 s15, s20, s15
    s_max_u32 s8, s8, s9
    s_max_u32 s10, s10, s11
    s_max_u32 s12, s12, s13
    s_max_u32 s14, s14, s15
    s_max_u32 s8, s8, s10
    s_max_u32 s12, s12, s14
    s_max_u32 s8, s8, s12
    s_min_u32 s8, s8, 3000
    v_mov_b32 v1, 0
    v_mov_b32 v2, s8
    s_mov_b64 exec, 1
    global_store_dword v1, v2, s[6:7] offset:64
    s_mul_i32 s8, s8, %d
A_spin:
    s_sleep 1
    s_memrealtime s[22:23]
    s_waitcnt lgkmcnt(0)
    s_sub_u32 s16, s22, s20
    s_cmp_lt_u32 s16, s8
    s_cbranch_scc1 A_spin
A_done:
    s_endpgm
""" % K
    main = main.replace("@@DONE@@", rec.replace("@G@", str(g)))
    rest = re.sub(r"next_free_sgpr \d+", "next_free_sgpr 48", rest)
    rest += """.p2align 6
.amdhsa_kernel amp_kernel
  .amdhsa_next_free_vgpr 8
  .amdhsa_next_free_sgpr 32
  .amdhsa_accum_offset 8
  .amdhsa_group_segment_fixed_size 0
  .amdhsa_kernarg_size 40
  .amdhsa_user_sgpr_count 2
  .amdhsa_user_sgpr_kernarg_segment_ptr 1
  .amdhsa_system_sgpr_workgroup_id_x 1
.end_amdhsa_kernel
"""
    return main + rest
if __name__=="__main__":
    for f in sys.argv[1:]:
        s=open(f"var/{f}.s").read()
        open(f"amp_{f}.s","w").write(wrap(s))
```

```python
HDR = """; Kernarg layout for this problem (40 bytes, ptrs only, base s[0:1]):
"""
NAME = "standalone__rmsnorm__sampling_kernel"

def gen(block=512, ld="", st="nt", endbar=False, stage=None, gafter=0, gate=None, nlate=None, st_early=None):
    waves = block // 64
    rows_per_wg = waves * 4
    grid = 8192 // rows_per_wg
    lds = 1280
    L = []; a = L.append
    a(HDR + f"; @launch grid=({grid},1,1) block=({block},1,1) lds={lds}")
    a('.amdgcn_target "amdgcn-amd-amdhsa--gfx950"'); a(".text"); a(f".globl {NAME}"); a(".p2align 12"); a(".p2align 8"); a(f".type {NAME},@function"); a(f"{NAME}:")
    a("    s_load_dwordx4 s[4:7], s[0:1], 0        ; x, g")
    a("    s_load_dwordx2 s[8:9], s[0:1], 16       ; out")
    a(f"    s_cmpk_ge_u32 s2, {grid}")
    a("    s_cbranch_scc1 L_done")
    a("    v_readfirstlane_b32 s11, v0             ; wave*64")
    a(f"    s_mul_i32 s3, s2, {rows_per_wg*1280}")
    a("    v_lshrrev_b32 v1, 4, v0")
    a("    v_and_b32 v2, 15, v0")
    a("    v_lshlrev_b32 v2, 4, v2")
    a("    v_mul_u32_u24 v1, 1280, v1")
    a("    v_add3_u32 v1, v1, v2, s3               ; xoff")
    a("    s_mov_b32 s10, 0xffff0000")
    a("    v_lshlrev_b32 v84, 4, v0                ; tid*16")
    a("    s_mov_b32 m0, 0")
    a("    v_mov_b32 v3, 0")
    X = 4; G = 24; F = 44
    def xl(js):
        for j in js: a(f"    global_load_dwordx4 v[{X+4*j}:{X+4*j+3}], v1, s[4:5] offset:{256*j} {ld}")
    if stage is not None:
        a(f"    s_cmpk_ge_u32 s11, {block//2}")
        a("    s_waitcnt lgkmcnt(0)")
        a("    s_cbranch_scc1 L_late")
        a("    s_cmp_lg_u32 s11, 0")
    else:
        a("    s_cmp_lg_u32 s11, 0")
        a("    s_waitcnt lgkmcnt(0)")
    xl(range(gafter))
    a("    s_cbranch_scc1 L_nog")
    a("    global_load_lds_dwordx4 v84, s[6:7]")
    a("    s_mov_b64 exec, 0xffff")
    a("    global_load_lds_dwordx4 v84, s[6:7] offset:1024")
    a("    s_mov_b64 exec, -1")
    a("L_nog:")
    xl(range(gafter,5))
    k = max(stage or 0, gafter)
    a(f"    s_waitcnt vmcnt({5-k})")
    a("    s_barrier")
    if stage is not None:
        a("    s_branch L_go")
        a("L_late:")
        a("    s_barrier")
        xl(range(5))
        a("L_go:")
    for j in range(5): a(f"    ds_read_b128 v[{G+4*j}:{G+4*j+3}], v2 offset:{256*j}")
    for j in range(5):
        a(f"    s_waitcnt lgkmcnt({4-j})")
        for kk in range(4):
            g=G+4*j+kk; f=F+8*j+2*kk
            a(f"    v_lshlrev_b32 v{f}, 16, v{g}")
            a(f"    v_and_b32 v{f+1}, s10, v{g}")
    def xmul(j):
        ins=[]
        for kk in range(4):
            r=X+4*j+kk; f=F+8*j+2*kk; t=G+2*kk
            ins.append(f"    v_lshlrev_b32 v{t}, 16, v{r}")
            ins.append(f"    v_and_b32 v{t+1}, s10, v{r}")
            ins.append(f"    v_pk_mul_f32 v[{f}:{f+1}], v[{f}:{f+1}], v[{t}:{t+1}]")
        return ins
    fill=[]
    for j in range(5):
        a(f"    s_waitcnt vmcnt({4-j})")
        if j==4: a(";XLAST")
        if gate is not None and j==4-gate:
            a(f"    s_cmpk_lt_u32 s11, {block-64*(nlate or waves//2)}")
            a("    s_cbranch_scc1 L_e1")
            a("    s_barrier")
            a("L_e1:")
        for kk in range(4):
            r=X+4*j+kk
            a(f"    v_dot2c_f32_bf16 v3, v{r}, v{r}")
        if j<4:
            for i in xmul(j): a(i)
        else: fill += xmul(4)
    def take(n):
        for _ in range(n):
            if fill: a(fill.pop(0))
            else: a("    s_nop 0")
    take(3)
    for d in (8,4,2,1):
        a(f"    v_add_f32_dpp v3, v3, v3 row_ror:{d} row_mask:0xf bank_mask:0xf")
        if d != 1: take(2)
    a("    v_mov_b32 v2, 0x358637bd                ; 1e-6")
    a("    v_fmac_f32 v2, 0x3acccccd, v3           ; + ss/640")
    a("    v_rsq_f32 v2, v2")
    take(max(len(fill),1))
    a(";PRESTORE")
    for j in range(5):
        for kk in range(4):
            f = F+8*j+2*kk
            a(f"    v_pk_mul_f32 v[{f}:{f+1}], v[{f}:{f+1}], v[2:3] op_sel_hi:[1,0]")
        for kk in range(4):
            r = X+4*j+kk; f = F+8*j+2*kk
            a(f"    v_cvt_pk_bf16_f32 v{r}, v{f}, v{f+1}")
        if gate is not None and j==0:
            a("    s_cbranch_scc0 L_e2")
            a("    s_barrier")
            a("L_e2:")
        if not endbar:
            a(f"    global_store_dwordx4 v1, v[{X+4*j}:{X+4*j+3}], s[8:9] offset:{256*j} {st}")
    if endbar:
        a("    s_barrier")
        for j in range(5):
            a(f"    global_store_dwordx4 v1, v[{X+4*j}:{X+4*j+3}], s[8:9] offset:{256*j} {st}")
    a("L_done:"); a("    s_endpgm")
    a('.section .rodata,"a"'); a(".p2align 6"); a(f".amdhsa_kernel {NAME}")
    a("  .amdhsa_next_free_vgpr 88"); a("  .amdhsa_next_free_sgpr 16"); a("  .amdhsa_accum_offset 88")
    a("  .amdhsa_group_segment_fixed_size 0"); a("  .amdhsa_kernarg_size 40"); a("  .amdhsa_user_sgpr_count 2")
    a("  .amdhsa_user_sgpr_kernarg_segment_ptr 1"); a("  .amdhsa_system_sgpr_workgroup_id_x 1"); a("  .amdhsa_float_denorm_mode_32 3")
    a(".end_amdhsa_kernel")
    return "\n".join(L) + "\n", grid, block, lds

if __name__ == "__main__":
    import amp, json
    specs=[]
    def mk(name, **k):
        s,g,b,l=gen(**k); open(f"var/{name}.s","w").write(s); specs.append(f"var/{name}.co:{g}:{b}:{l}")
        open(f"amp_{name}.s","w").write(amp.wrap(s))
    mk("G_0",gate=0)
    mk("G_1",gate=1)
    mk("G_2",gate=2)
    mk("G_4",gate=4)
    mk("G_0sc",gate=0,st="sc1")
    mk("G_2sc",gate=2,st="sc1")
    mk("G_0n2",gate=0,nlate=2)
    mk("G_0n6",gate=0,nlate=6)
    mk("G_0s01",gate=0,st="sc0 sc1")
    print(" ".join(specs)); print(json.dumps(["bench/bench"]+[x.split(":")[0] for x in specs]))
```

```python
NAME = "standalone__rmsnorm__sampling_kernel"
L=[]; a=L.append
PRE=2
a("""; Kernarg layout for this problem (40 bytes, ptrs only, base s[0:1]):
; @launch grid=(256,1,1) block=(512,1,1) lds=1280""")
a('.amdgcn_target "amdgcn-amd-amdhsa--gfx950"'); a(".text"); a(f".globl {NAME}"); a(".p2align 12"); a(".p2align 8"); a(f".type {NAME},@function"); a(f"{NAME}:")
a("""    s_load_dwordx4 s[4:7], s[0:1], 0        ; s[4:5] = x, s[6:7] = g
    s_load_dwordx2 s[8:9], s[0:1], 16       ; s[8:9] = out
    s_cmpk_ge_u32 s2, 256
    s_cbranch_scc1 L_done
    v_readfirstlane_b32 s11, v0             ; wave * 64
    s_and_b32 s12, s2, 7
    s_lshl_b32 s12, s12, 5
    s_lshr_b32 s13, s2, 3
    s_add_u32 s12, s12, s13
    s_mul_i32 s3, s12, 40960
    v_lshrrev_b32 v1, 4, v0
    v_and_b32 v2, 15, v0
    v_lshlrev_b32 v2, 4, v2
    v_mul_u32_u24 v1, 1280, v1
    v_add3_u32 v1, v1, v2, s3
    s_mov_b32 s10, 0xffff0000
    v_mov_b32 v3, 0
    s_cmp_lg_u32 s11, 0
    s_cbranch_scc1 L_nog
    v_lshlrev_b32 v84, 4, v0
    v_lshlrev_b32 v85, 2, v0
    s_mov_b32 m0, 0
    s_waitcnt lgkmcnt(0)
    global_load_lds_dwordx4 v84, s[6:7]
    global_load_lds_dword v85, s[6:7] offset:1024
L_nog:
    s_waitcnt lgkmcnt(0)""")
X=4; G=24; F=44
for j in range(5): a(f"    global_load_dwordx4 v[{X+4*j}:{X+4*j+3}], v1, s[4:5] offset:{256*j}")
a("    s_waitcnt vmcnt(5)")
a("    s_barrier")
for j in range(5): a(f"    ds_read_b128 v[{G+4*j}:{G+4*j+3}], v2 offset:{256*j}")
a("    s_cmpk_lt_u32 s11, 256")
a("    ; g -> f32 in v[44:83]")
for j in range(5):
    a(f"    s_waitcnt lgkmcnt({4-j})")
    for k in range(4):
        g=G+4*j+k; f=F+8*j+2*k
        a(f"    v_lshlrev_b32 v{f}, 16, v{g}"); a(f"    v_and_b32 v{f+1}, s10, v{g}")
def xmul(j):
    ins=[]
    for k in range(4):
        r=X+4*j+k; f=F+8*j+2*k; t=G+2*k
        ins += [f"    v_lshlrev_b32 v{t}, 16, v{r}", f"    v_and_b32 v{t+1}, s10, v{r}", f"    v_pk_mul_f32 v[{f}:{f+1}], v[{f}:{f+1}], v[{t}:{t+1}]"]
    return ins
for j in range(5):
    a(f"    s_waitcnt vmcnt({4-j})")
    if j==4:
        a("    s_cbranch_scc1 L_e1")
        a("    s_barrier")
        a("L_e1:")
    for k in range(4): a(f"    v_dot2c_f32_bf16 v3, v{X+4*j+k}, v{X+4*j+k}")
    if j<4:
        for i in xmul(j): a(i)
fill=xmul(4)
def take(n):
    for _ in range(n): a(fill.pop(0))
take(3)
for d in (8,4,2,1):
    a(f"    v_add_f32_dpp v3, v3, v3 row_ror:{d} row_mask:0xf bank_mask:0xf")
    if d!=1: take(2)
a("    v_mov_b32 v2, 0x358637bd                ; 1e-6")
a("    v_fmac_f32 v2, 0x3acccccd, v3           ; + sum / 640")
a("    v_rsq_f32 v2, v2")
take(3); assert not fill
for j in range(5):
    for k in range(4):
        f=F+8*j+2*k
        a(f"    v_pk_mul_f32 v[{f}:{f+1}], v[{f}:{f+1}], v[2:3] op_sel_hi:[1,0]")
    for k in range(4):
        a(f"    v_cvt_pk_bf16_f32 v{X+4*j+k}, v{F+8*j+2*k}, v{F+8*j+2*k+1}")
    if j<PRE: a(f"    global_store_dwordx4 v1, v[{X+4*j}:{X+4*j+3}], s[8:9] offset:{256*j} nt")
a("    s_cbranch_scc0 L_e2")
a("    s_barrier")
a("L_e2:")
for j in range(PRE,5): a(f"    global_store_dwordx4 v1, v[{X+4*j}:{X+4*j+3}], s[8:9] offset:{256*j} nt")
a("L_done:"); a("    s_endpgm")
a('.section .rodata,"a"'); a(".p2align 6"); a(f".amdhsa_kernel {NAME}")
a("  .amdhsa_next_free_vgpr 88"); a("  .amdhsa_next_free_sgpr 16"); a("  .amdhsa_accum_offset 88")
a("  .amdhsa_group_segment_fixed_size 0"); a("  .amdhsa_kernarg_size 40"); a("  .amdhsa_user_sgpr_count 2")
a("  .amdhsa_user_sgpr_kernarg_segment_ptr 1"); a("  .amdhsa_system_sgpr_workgroup_id_x 1"); a("  .amdhsa_float_denorm_mode_32 3")
a(".end_amdhsa_kernel")
open("FINAL.s","w").write("\n".join(L)+"\n")
```
